```python
import torch

def _softmax(x, axis=-1):
    return torch.softmax(x, dim=axis)
def _gelu(x):
    return torch.nn.functional.gelu(x, approximate="tanh")
def _silu(x):
    return torch.nn.functional.silu(x)
def _sigmoid(x):
    return torch.sigmoid(x)
def _layernorm(x, axis=-1, eps=1e-5):
    m = x.mean(dim=axis, keepdim=True)
    v = x.var(dim=axis, keepdim=True, unbiased=False)
    return (x - m) / torch.sqrt(v + eps)
def _scatter_add(tgt, idx, src, axis=0):
    return tgt.clone().index_add_(axis, idx, src)
def _segment_sum(src, seg, n):
    out = torch.zeros((n,) + src.shape[1:], dtype=src.dtype)
    return out.index_add_(0, seg, src)
def _pad(x, pw):
    flat = tuple(v for pair in reversed(pw) for v in pair)
    return torch.nn.functional.pad(x, flat)

kernel_name = 'gated_mix__sliding_block_cached__dense_activation_relu__decode'

def setup_inputs():

    _w = (lambda a: (lambda t: t.to(torch.bfloat16) if t.is_floating_point() else t)(torch.as_tensor(a)))
    def _A_setup():
        B, Sq, D = 4, 1, 448
        Hq, Hkv, Sk, Dh = 16, 8, 8192, 256
        assert Hq % Hkv == 0, (Hq, Hkv)
        return {
            "x": _w((lambda *s: torch.randn(*s, dtype=torch.bfloat16) * 0.05)(B, Sq, D)),
            "k_cache": _w((lambda *s: torch.randn(*s, dtype=torch.bfloat16) * 6.4)(B, Hkv, Sk, Dh)),
            "v_cache": _w((lambda *s: torch.randn(*s, dtype=torch.bfloat16) * 0.4)(B, Hkv, Sk, Dh)),
            "wq": _w((lambda *s: torch.randn(*s, dtype=torch.bfloat16) * 6.4)(D, Hq * Dh) * (D ** -0.5)),
            "wo": _w((lambda *s: torch.randn(*s, dtype=torch.bfloat16) * 0.4)(Hq * Dh, D) * ((Hq * Dh) ** -0.5)),
        }
    _A_in = _A_setup()

    def _B_setup():
        B, S, D, Dff = 4, 1, 448, 1792
        return {
            "x": _w((lambda *s: torch.randn(*s, dtype=torch.bfloat16) * 0.05)(B, S, D)),
            "w1": _w((lambda *s: torch.randn(*s, dtype=torch.bfloat16) * 0.05)(D, Dff)),
            "w2": _w((lambda *s: torch.randn(*s, dtype=torch.bfloat16) * 0.05)(Dff, D)),
        }
    _B_in = _B_setup()

    return {
        "A_x": _A_in["x"],
        "A_k_cache": _A_in["k_cache"],
        "A_v_cache": _A_in["v_cache"],
        "A_wq": _A_in["wq"],
        "A_wo": _A_in["wo"],
        "B_x": _B_in["x"],
        "B_w1": _B_in["w1"],
        "B_w2": _B_in["w2"],
        "gate_w": _w((lambda *s: torch.randn(*s, dtype=torch.bfloat16) * 0.05)(448) * 16.0),
    }

def reference(A_x, A_k_cache, A_v_cache, A_wq, A_wo, B_x, B_w1, B_w2, gate_w):
    def _A_ref(x, k_cache, v_cache, wq, wo):
        B, Sq, D = x.shape
        Hq, Dh = 16, 256
        Hkv, Sk = k_cache.shape[1], k_cache.shape[2]
        W = min(4096, max(256, Sk // 4))
        rep = Hq // Hkv
        q = (lambda x, *d: x.permute(*d))((x @ wq).reshape(B, Sq, Hq, Dh), 0, 2, 1, 3)
        k = (lambda x, n, axis: torch.repeat_interleave(x, n, dim=axis))(k_cache[:, :, Sk - W:, :], rep, axis=1)
        v = (lambda x, n, axis: torch.repeat_interleave(x, n, dim=axis))(v_cache[:, :, Sk - W:, :], rep, axis=1)
        scores = torch.einsum("bhqd,bhkd->bhqk", q, k) * (Dh ** -0.5)
        p = _softmax(scores, axis=-1)
        o = torch.einsum("bhqk,bhkd->bhqd", p, v)
        return (lambda x, *d: x.permute(*d))(o, 0, 2, 1, 3).reshape(B, Sq, Hq * Dh) @ wo

    def _B_ref(x, w1, w2):
        h = torch.einsum("bsd,df->bsf", x, w1)
        zero = torch.zeros_like(h)
        h = torch.maximum(h, zero)
        return torch.einsum("bsf,fd->bsd", h, w2)

    x = A_x
    g = _sigmoid((x * gate_w).sum(-1, keepdims=True))
    a = _A_ref(x, A_k_cache, A_v_cache, A_wq, A_wo)
    b = _B_ref(x, B_w1, B_w2)
    return g * a + (1 - g) * b
```

```python
import sys
KN = "gated_mix__sliding_block_cached__dense_activation_relu__decode_kernel"

XA, XB, WQ, W12, GW, WO, QL = 0x0000, 0x1000, 0x2000, 0x5800, 0x9000, 0x9400, 0xCC00
ST, FL, GL, HL, OL = 0xD000, 0xD400, 0xD440, 0xD500, 0xD600
OP, OPS = 0xE000, 2112
RD = XA
LDS_BYTES = 0x16800
QM, HM, P1, P1S, P2, P2S = 0x1000, 0x42000, 0x60000, 2176, 0x100000, 7168
WS_USED = 0x300000
SPIN_MAX = 0x40000

def gen(stamps=False, wflags="", kvflags="nt", header="", burst="2", gap="v_mov_b32 v9, v9;v_mov_b32 v9, v9"):
    burst = int(burst); gap = gap.replace(";", "\n")
    L = []
    def A(s):
        for line in s.split("\n"):
            line = line.strip()
            if not line: continue
            L.append(line if line.endswith(":") else "    " + line)
    nst = [0]
    def stamp(i):
        if stamps:
            A(f"s_memrealtime s[{70+2*i}:{71+2*i}]")
    def srd(d, lo, hi, off, size):
        if off is None:
            A(f"s_mov_b32 s{d}, s{lo}\ns_and_b32 s{d+1}, s{hi}, 0xffff")
        else:
            A(f"s_add_u32 s{d}, s{lo}, {off}\ns_addc_u32 s{d+1}, s{hi}, 0\ns_and_b32 s{d+1}, s{d+1}, 0xffff")
        A(f"s_mov_b32 s{d+2}, {size}\ns_mov_b32 s{d+3}, 0x20000")
    def dma(voff, srdn, ldsaddr, soff):
        A(f"s_mov_b32 m0, {ldsaddr}\ns_mov_b32 s60, {soff}")
        A(f"buffer_load_dwordx4 {voff}, s[{srdn}:{srdn+3}], s60 offen {wflags} lds")
    def tagchk(d, t0, t1, first):
        A(f"v_perm_b32 {t0}, v{d+1}, v{d}, s38\nv_perm_b32 {t1}, v{d+3}, v{d+2}, s39\nv_or_b32 {t0}, {t0}, {t1}")
        if first: A(f"v_cmp_ne_u32 s[62:63], s33, {t0}")
        else: A(f"v_cmp_ne_u32 vcc, s33, {t0}\ns_or_b64 s[62:63], s[62:63], vcc")

    L.append(header.rstrip("\n"))
    L.append(f"; @launch grid=(256,1,1) block=(1024,1,1) lds={LDS_BYTES}")
    L.append('.amdgcn_target "amdgcn-amd-amdhsa--gfx950"\n.text\n.globl %s\n.p2align 8\n.type %s,@function\n%s:' % (KN, KN, KN))
    A("s_cmp_ge_u32 s2, 256\ns_cbranch_scc1 L_end")
    if stamps:
        for i in range(1, 13): A(f"s_mov_b64 s[{70+2*i}:{71+2*i}], 0")
    stamp(0)
    A("s_load_dwordx16 s[4:19], s[0:1], 0\ns_load_dwordx8 s[20:27], s[0:1], 64")
    A("v_lshrrev_b32 v1, 6, v0\nv_and_b32 v2, 63, v0\nv_mov_b32 v9, 0\nv_readfirstlane_b32 s3, v1")
    A(f"v_mov_b32 v10, {FL}\nds_write_b32 v10, v9")
    A("s_and_b32 s28, s2, 7\ns_lshr_b32 s29, s2, 3\ns_lshr_b32 s30, s29, 3\ns_and_b32 s31, s29, 7")
    A("s_lshl_b32 s34, s30, 3\ns_add_u32 s34, s34, s28\ns_lshl_b32 s34, s34, 22\ns_lshl_b32 s35, s31, 17\ns_add_u32 s34, s34, s35")
    A("s_lshl_b32 s35, s3, 12\ns_add_u32 s34, s34, s35\ns_add_u32 s34, s34, 0x300000\ns_sub_u32 s35, 0x8000000, s34")
    A("v_lshrrev_b32 v11, 4, v2\nv_and_b32 v12, 15, v2")
    A("v_and_b32 v3, 7, v2\nv_lshlrev_b32 v3, 9, v3\nv_lshl_add_u32 v3, v11, 4, v3\nv_bfe_u32 v13, v2, 3, 1\nv_lshl_add_u32 v3, v13, 16, v3")
    A("v_lshlrev_b32 v4, 4, v12\nv_and_b32 v13, 1, v11\nv_lshl_add_u32 v4, v13, 11, v4\nv_lshrrev_b32 v13, 1, v11\nv_lshl_add_u32 v4, v13, 16, v4")
    A("v_and_b32 v13, 1, v2\nv_lshlrev_b32 v13, 4, v13\nv_mov_b32 v14, 0xffff\nv_lshlrev_b32 v14, v13, v14\nv_bfe_u32 v13, v2, 1, 2")
    for r in range(4):
        A(f"v_cmp_eq_u32 vcc, {r}, v13\ns_nop 1\nv_cndmask_b32 v{5+r}, 0, v14, vcc")
    A("s_mov_b32 s38, 0x0c0c0400\ns_mov_b32 s39, 0x04000c0c")
    A("s_waitcnt lgkmcnt(0)")
    A("s_load_dword s32, s[26:27], 0")
    srd(40, 6, 7, "s34", "s35")
    srd(44, 8, 9, "s34", "s35")
    srd(48, 26, 27, None, WS_USED)
    A("s_cmp_eq_u32 s3, 1\ns_cbranch_scc1 L_w1\ns_cmp_lg_u32 s3, 0\ns_cbranch_scc1 L_kv")
    A("L_w0:")
    A("s_setprio 3")
    srd(52, 10, 11, None, 448*8192)
    A(f"s_movk_i32 s64, 8192\ns_mul_i32 s65, s30, {112*8192}\ns_lshl_b32 s36, s28, 10\ns_add_u32 s65, s65, s36\ns_lshl_b32 s36, s31, 7\ns_add_u32 s65, s65, s36")
    A(f"s_movk_i32 s66, {WQ}\ns_movk_i32 s67, {XA}\ns_mov_b32 s68, s30")
    A(f"s_lshl_b32 s54, s28, 15\ns_lshl_b32 s36, s30, 11\ns_add_u32 s98, s54, s36\ns_lshl_b32 s36, s31, 8\ns_add_u32 s98, s98, s36\ns_add_u32 s98, s98, {QM}\ns_movk_i32 s99, 8192\ns_mov_b32 s54, {448*8192}")
    A("s_branch L_tile")
    A("L_w1:")
    A("s_setprio 2")
    srd(52, 16, 17, None, 448*3584)
    A(f"s_movk_i32 s64, 3584\ns_lshr_b32 s68, s28, 1\ns_and_b32 s36, s28, 1\ns_mul_i32 s36, s36, 14\ns_add_u32 s36, s36, s29\ns_mul_i32 s65, s68, {112*3584}\ns_lshl_b32 s37, s36, 7\ns_add_u32 s65, s65, s37")
    A(f"s_movk_i32 s66, {W12}\ns_movk_i32 s67, {XB}")
    A(f"s_mul_i32 s98, s68, 7168\ns_lshl_b32 s36, s36, 8\ns_add_u32 s98, s98, s36\ns_add_u32 s98, s98, {HM}\ns_movk_i32 s99, 28672")
    srd(56, 20, 21, None, 896)
    A("v_lshlrev_b32 v14, 4, v2")
    dma("v14", 56, GW, 0)
    A("s_cmp_ge_u32 s29, 14\ns_cbranch_scc1 L_xcopy")
    A("L_tile:")
    A("v_lshrrev_b32 v13, 3, v2\nv_mul_lo_u32 v13, v13, s64\nv_and_b32 v14, 7, v2\nv_lshl_add_u32 v13, v14, 4, v13\ns_lshl_b32 s37, s64, 3\ns_mov_b32 s60, s65\ns_mov_b32 m0, s66")
    for i in range(14):
        A(f"buffer_load_dwordx4 v13, s[52:55], s60 offen {wflags} lds")
        if i < 13: A("s_add_u32 m0, m0, 1024\ns_add_u32 s60, s60, s37")
    A("L_xcopy:")
    srd(56, 4, 5, None, 3584)
    A("v_lshlrev_b32 v14, 4, v2\ns_mov_b32 m0, s67\ns_nop 0")
    for i in range(4):
        A(f"buffer_load_dwordx4 v14, s[56:59], 0 offen offset:{i*1024} lds")
    A("L_kv:")
    A("s_barrier")
    n = 0
    for kk in range(8):
        A(f"buffer_load_dwordx4 v[{64+4*kk}:{67+4*kk}], v3, s[40:43], 0 offen offset:{kk*64} {kvflags}")
        n += 1
        if n % burst == 0: A(gap)
    for t in range(4):
        for hf in range(2):
            i = 2*t + hf
            A(f"buffer_load_dwordx4 v[{96+4*i}:{99+4*i}], v4, s[44:47], 0 offen offset:{t*512+hf*256} {kvflags}")
            n += 1
            if n % burst == 0 and n < 16: A(gap)
    stamp(1)
    A("s_waitcnt lgkmcnt(0)")
    A("s_mul_i32 s33, s32, 1664525\ns_add_u32 s33, s33, 1013904223")
    A("s_cmp_eq_u32 s3, 0\ns_cbranch_scc1 L_q\ns_cmp_eq_u32 s3, 1\ns_cbranch_scc1 L_h\ns_cmp_eq_u32 s3, 3\ns_cbranch_scc1 L_hg\ns_branch L_waitq")

    A("L_h:")
    A("s_cmp_ge_u32 s29, 14\ns_cbranch_scc1 L_gate")
    A("L_q:")
    A("v_lshrrev_b32 v13, 2, v12\nv_lshl_add_u32 v13, v11, 2, v13\nv_lshlrev_b32 v13, 7, v13\nv_and_b32 v14, 3, v12\nv_lshl_add_u32 v13, v14, 3, v13\nv_add_u32 v13, s66, v13")
    A("s_mul_i32 s36, s68, 224\ns_add_u32 s36, s36, s67\nv_and_b32 v14, 3, v2\nv_mul_u32_u24 v14, 896, v14\nv_lshl_add_u32 v14, v11, 3, v14\nv_add_u32 v14, s36, v14")
    A("v_mul_lo_u32 v15, v12, s99\nv_lshl_add_u32 v15, v11, 4, v15\nv_add_u32 v15, s98, v15")
    A("s_and_b32 s36, s33, 0xff\ns_bfe_u32 s37, s33, 0x80008\ns_bfe_u32 s60, s33, 0x80010\ns_lshr_b32 s61, s33, 24\nv_mov_b32 v9, 0xff")
    A("s_waitcnt vmcnt(16)")
    stamp(2)
    def rd(ks):
        b = 32 + (ks % 3) * 10
        A(f"ds_read_b64 v[{b}:{b+1}], v14 offset:{ks*32}")
        for cb in range(4): A(f"ds_read_b64_tr_b16 v[{b+2+2*cb}:{b+3+2*cb}], v13 offset:{ks*2048+cb*32}")
    rd(0); rd(1)
    for ks in range(7):
        if ks + 2 < 7: rd(ks + 2)
        A(f"s_waitcnt lgkmcnt({min(2, 6-ks)*5})")
        b = 32 + (ks % 3) * 10
        for cb in range(4):
            c = "0" if ks == 0 else f"v[{16+4*cb}:{19+4*cb}]"
            A(f"v_mfma_f32_16x16x16_bf16 v[{16+4*cb}:{19+4*cb}], v[{b+2+2*cb}:{b+3+2*cb}], v[{b}:{b+1}], {c}")
    A("s_nop 4\ns_mov_b32 exec_lo, 0x000f000f\ns_mov_b32 exec_hi, 0x000f000f")
    for cb in range(4):
        for i, sr in enumerate(("s36", "s37", "s60", "s61")): A(f"v_bfi_b32 v{16+4*cb+i}, v9, {sr}, v{16+4*cb+i}")
    for cb in range(4):
        A(f"buffer_store_dwordx4 v[{16+4*cb}:{19+4*cb}], v15, s[48:51], 0 offen offset:{cb*64} sc0 sc1")
    A("s_mov_b64 exec, -1")
    stamp(3)
    A("s_cmp_eq_u32 s3, 1\ns_cbranch_scc1 L_gate")
    A(f"s_lshl_b32 s36, s28, 15\ns_lshl_b32 s37, s30, 13\ns_add_u32 s36, s36, s37\ns_add_u32 s36, s36, {QM}\ns_add_u32 s37, s36, 4096")
    A("v_lshlrev_b32 v13, 4, v2\ns_mov_b32 s61, 0")
    A("L_qpoll:")
    for i in range(8):
        A(f"buffer_load_dwordx4 v[{32+4*i}:{35+4*i}], v13, s[48:51], s{36+i//4} offen offset:{(i%4)*1024} sc0 sc1")
    A("s_add_u32 s61, s61, 1\ns_waitcnt vmcnt(0)")
    for i in range(8): tagchk(32+4*i, "v14", "v15", i == 0)
    A(f"s_cmp_gt_u32 s61, {SPIN_MAX}\ns_cbranch_scc1 L_qgot\ns_cmp_lg_u64 s[62:63], 0\ns_cbranch_scc1 L_qpoll")
    A("L_qgot:")
    for i in range(8): A(f"v_add_f32 v{32+i}, v{32+i}, v{40+i}\nv_add_f32 v{48+i}, v{48+i}, v{56+i}")
    for i in range(8): A(f"v_add_f32 v{32+i}, v{32+i}, v{48+i}")
    for i in range(4): A(f"v_cvt_pk_bf16_f32 v{32+i}, v{32+2*i}, v{33+2*i}")
    A(f"v_lshlrev_b32 v13, 3, v2\nds_write_b64 v13, v[32:33] offset:{QL}\nds_write_b64 v13, v[34:35] offset:{QL+512}")
    A("v_mov_b32 v14, 1\ns_waitcnt lgkmcnt(0)\nds_write_b32 v10, v14")
    A("s_setprio 0\ns_branch L_main")

    A("L_gate:")
    A(f"v_and_b32 v14, 3, v2\nv_mul_u32_u24 v14, 896, v14\nv_lshl_add_u32 v14, v11, 4, v14\nv_lshlrev_b32 v13, 4, v11")
    A("s_nop 0\ns_waitcnt vmcnt(16)")
    for k0 in range(0, 14, 4):
        ks = list(range(k0, min(k0+4, 14)))
        for n, kk in enumerate(ks):
            A(f"ds_read_b128 v[{32+8*n}:{35+8*n}], v13 offset:{GW+kk*64}\nds_read_b128 v[{36+8*n}:{39+8*n}], v14 offset:{XB+kk*64}")
        A("s_waitcnt lgkmcnt(0)")
        for n, kk in enumerate(ks):
            c = "0" if kk == 0 else "v[20:23]"
            A(f"v_mfma_f32_16x16x32_bf16 v[20:23], v[{32+8*n}:{35+8*n}], v[{36+8*n}:{39+8*n}], {c}")
    A("s_nop 7")
    A("v_cvt_pk_bf16_f32 v20, 0, v20\nv_mul_f32 v20, 0xbfb8aa3b, v20\nv_exp_f32 v20, v20\ns_nop 0\nv_add_f32 v20, 1.0, v20\nv_rcp_f32 v20, v20\ns_nop 0\nv_cvt_pk_bf16_f32 v20, 0, v20")
    A(f"v_lshlrev_b32 v14, 2, v12\ns_mov_b64 exec, 0xf\nds_write_b32 v14, v20 offset:{GL}\ns_mov_b64 exec, -1")
    A("s_setprio 0\ns_branch L_waitq")

    A("L_hg:")
    A("s_sub_u32 s37, s29, 14\ns_cmp_ge_u32 s37, 14\ns_cbranch_scc1 L_waitq")
    A(f"v_bfe_u32 v14, v2, 2, 2\nv_lshl_add_u32 v13, v14, 2, v11\nv_mul_u32_u24 v13, 7168, v13\nv_and_b32 v15, 3, v2\nv_lshl_add_u32 v13, v15, 4, v13\ns_mul_i32 s36, s28, 14\ns_add_u32 s36, s36, s37\ns_lshl_b32 s36, s36, 6\ns_add_u32 s36, s36, {HM}")
    A("v_lshrrev_b32 v16, 1, v11\nv_and_b32 v17, 1, v11\nv_lshl_add_u32 v16, v17, 1, v16\nv_lshlrev_b32 v16, 2, v16\nv_lshl_add_u32 v16, v12, 4, v16\ns_mov_b32 s61, 0")
    A("L_hpoll:")
    A("buffer_load_dwordx4 v[32:35], v13, s[48:51], s36 offen sc0 sc1\ns_add_u32 s61, s61, 1\ns_waitcnt vmcnt(0)")
    tagchk(32, "v14", "v15", True)
    A(f"s_cmp_gt_u32 s61, {SPIN_MAX}\ns_cbranch_scc1 L_hgot\ns_cmp_lg_u64 s[62:63], 0\ns_cbranch_scc1 L_hpoll")
    A("L_hgot:")
    A("v_permlane32_swap_b32 v32, v33\nv_permlane32_swap_b32 v34, v35\nv_add_f32 v32, v32, v33\nv_add_f32 v34, v34, v35\ns_nop 1\nv_permlane16_swap_b32 v32, v34\nv_add_f32 v32, v32, v34")
    A(f"v_max_f32 v32, 0, v32\nv_cvt_pk_bf16_f32 v32, v32, v32\nds_write_b32 v16, v32 offset:{HL}")

    A("L_waitq:")
    A("s_mov_b32 s61, 0")
    A("L_qspin:")
    A(f"ds_read_b32 v14, v10\ns_add_u32 s61, s61, 1\ns_waitcnt lgkmcnt(0)\nv_readfirstlane_b32 s36, v14\ns_cmp_gt_u32 s61, {SPIN_MAX*4}\ns_cbranch_scc1 L_main\ns_cmp_lg_u32 s36, 0\ns_cbranch_scc1 L_main\ns_sleep 2\ns_branch L_qspin")
    A("L_main:")
    stamp(4)
    A(f"v_bfe_u32 v13, v2, 3, 1\nv_lshlrev_b32 v13, 9, v13\nv_lshl_add_u32 v13, v11, 4, v13")
    for kk in range(8):
        A(f"ds_read_b128 v[{32+4*kk}:{35+4*kk}], v13 offset:{QL+kk*64}")
    A("s_waitcnt vmcnt(8) lgkmcnt(0)")
    for kk in range(8):
        c = "0" if kk == 0 else "v[16:19]"
        A(f"v_mfma_f32_16x16x32_bf16 v[16:19], v[{64+4*kk}:{67+4*kk}], v[{32+4*kk}:{35+4*kk}], {c}")
    A("s_cmp_lt_u32 s3, 12\ns_cbranch_scc1 L_now")
    srd(52, 12, 13, None, 4096*896)
    srd(56, 18, 19, None, 1792*896)
    A("s_sub_u32 s37, s29, 14\ns_cmp_ge_u32 s37, 14\ns_cselect_b32 s58, 0, s58\ns_mul_i32 s65, s28, 14\ns_add_u32 s65, s65, s37\ns_mul_i32 s65, s65, 14336")
    A("s_lshl_b32 s64, s28, 5\ns_add_u32 s64, s64, s29\ns_mul_i32 s64, s64, 14336\ns_and_b32 s36, s3, 3\ns_lshl_b32 s36, s36, 8")
    A("v_mul_u32_u24 v14, 3584, v11\nv_lshl_add_u32 v14, v12, 4, v14\nv_add_u32 v14, s36, v14")
    for kq in range(4):
        A(f"buffer_load_dwordx4 v[{64+4*kq}:{67+4*kq}], v14, s[52:55], s64 offen offset:{kq*896} {wflags}")
    for kq in range(4):
        A(f"buffer_load_dwordx4 v[{80+4*kq}:{83+4*kq}], v14, s[56:59], s65 offen offset:{kq*896} {wflags}")
    A("L_now:")
    A("s_mov_b32 s36, 0x3db8aa3b\ns_mov_b32 s37, 0xffff0000\ns_nop 5")
    A("v_cvt_pk_bf16_f32 v20, v16, v17\nv_cvt_pk_bf16_f32 v21, v18, v19")
    A("v_lshlrev_b32 v16, 16, v20\nv_and_b32 v17, s37, v20\nv_lshlrev_b32 v18, 16, v21\nv_and_b32 v19, s37, v21")
    A("v_mul_f32 v16, s36, v16\nv_mul_f32 v17, s36, v17\nv_mul_f32 v18, s36, v18\nv_mul_f32 v19, s36, v19")
    A("v_max_f32 v20, v16, v17\nv_max3_f32 v20, v20, v18, v19\nv_mov_b32 v21, v20\ns_nop 1\nv_permlane32_swap_b32 v20, v21\nv_max_f32 v20, v20, v21\nv_mov_b32 v21, v20\ns_nop 1\nv_permlane16_swap_b32 v20, v21\nv_max_f32 v20, v20, v21")
    A("v_sub_f32 v16, v16, v20\nv_sub_f32 v17, v17, v20\nv_sub_f32 v18, v18, v20\nv_sub_f32 v19, v19, v20")
    A("v_exp_f32 v16, v16\nv_exp_f32 v17, v17\nv_exp_f32 v18, v18\nv_exp_f32 v19, v19")
    A("v_add_f32 v21, v16, v17\nv_add_f32 v22, v18, v19\nv_add_f32 v21, v21, v22")
    for t in range(4):
        A(f"v_cvt_pk_bf16_f32 v{16+t}, v{16+t}, v{16+t}")
    for t in range(4):
        for r in range(4):
            A(f"v_and_b32 v{32+4*t+r}, v{16+t}, v{5+r}")
    A("v_mov_b32 v22, v21\ns_nop 1\nv_permlane32_swap_b32 v21, v22\nv_add_f32 v21, v21, v22\nv_mov_b32 v22, v21\ns_nop 1\nv_permlane16_swap_b32 v21, v22\nv_add_f32 v21, v21, v22")
    A(f"s_lshl_b32 s36, s3, 2\nv_lshlrev_b32 v13, 3, v2\nv_add_u32 v13, s36, v13\ns_mov_b64 exec, 0x101\nds_write_b32 v13, v20 offset:{ST}\nds_write_b32 v13, v21 offset:{ST+128}\ns_mov_b64 exec, -1")
    A(f"s_mul_i32 s36, s3, {OPS}\nv_lshrrev_b32 v13, 1, v11\nv_lshlrev_b32 v13, 10, v13\nv_lshl_add_u32 v13, v12, 5, v13\nv_and_b32 v14, 1, v11\nv_lshl_add_u32 v13, v14, 4, v13\nv_add_u32 v13, s36, v13")
    def pv(extra):
        for t in range(4):
            A(f"s_waitcnt vmcnt({6-2*t+extra})")
            for hf in range(2):
                i = 2*t + hf
                c = "0" if t == 0 else f"v[{24+4*hf}:{27+4*hf}]"
                A(f"v_mfma_f32_16x16x32_bf16 v[{24+4*hf}:{27+4*hf}], v[{32+4*t}:{35+4*t}], v[{96+4*i}:{99+4*i}], {c}")
    A("s_cmp_lt_u32 s3, 12\ns_cbranch_scc1 L_pv0")
    pv(8)
    A("s_branch L_pv1\nL_pv0:")
    pv(0)
    A("L_pv1:")
    stamp(5)
    A("s_nop 6")
    A(f"ds_write_b128 v13, v[24:27] offset:{OP}\nds_write_b128 v13, v[28:31] offset:{OP+512}")
    A(f"s_lshr_b32 s36, s3, 3\ns_lshl_b32 s36, s36, 6\nv_mov_b32 v14, s36")
    A(f"v_lshrrev_b32 v15, 3, v2\nv_lshl_add_u32 v16, v15, 3, v14")
    A(f"v_mul_u32_u24 v15, {2*OPS}, v15\nv_and_b32 v17, 7, v2\nv_lshl_add_u32 v15, v17, 4, v15\ns_lshl_b32 s37, s3, 7\nv_add_u32 v15, s37, v15")
    A(f"v_lshl_add_u32 v18, v12, 2, v14")
    A("v_lshrrev_b32 v19, 1, v11\nv_and_b32 v20, 1, v11\nv_lshl_add_u32 v19, v20, 1, v19\nv_lshlrev_b32 v20, 3, v19\nv_lshrrev_b32 v20, v20, s33\nv_and_b32 v20, 0xff, v20")
    A(f"s_mul_i32 s36, s2, {P1S}\ns_add_u32 s36, s36, {P1}\ns_add_u32 s37, s37, s36\nv_lshlrev_b32 v21, 4, v17\nv_lshl_add_u32 v21, v19, 2, v21\nv_add_u32 v21, s37, v21")
    A("s_mov_b32 s60, 0xffffff00\ns_mov_b32 s61, 0xff")
    A("s_waitcnt lgkmcnt(0)\ns_barrier")
    stamp(6)
    for i in range(4):
        A(f"ds_read_b128 v[{32+4*i}:{35+4*i}], v14 offset:{ST+16*i}")
    A(f"ds_read_b64 v[48:49], v16 offset:{ST}\nds_read_b128 v[52:55], v15 offset:{OP}\nds_read_b128 v[56:59], v15 offset:{OP+OPS}")
    A(f"ds_read_b32 v50, v18 offset:{ST}\nds_read_b32 v51, v18 offset:{ST+128}")
    A("s_waitcnt lgkmcnt(5)")
    A("v_max3_f32 v32, v32, v33, v34\nv_max3_f32 v35, v35, v36, v37\nv_max3_f32 v38, v38, v39, v40\nv_max3_f32 v41, v41, v42, v43\nv_max3_f32 v44, v44, v45, v46")
    A("v_max3_f32 v32, v32, v35, v38\nv_max3_f32 v41, v41, v44, v47\nv_max_f32 v32, v32, v41\nv_and_b32 v32, s60, v32")
    A("s_waitcnt lgkmcnt(4)")
    A("v_sub_f32 v48, v48, v32\nv_sub_f32 v49, v49, v32\nv_exp_f32 v48, v48\nv_exp_f32 v49, v49")
    A("s_waitcnt lgkmcnt(2)")
    for i in range(4): A(f"v_mul_f32 v{52+i}, v{52+i}, v48")
    for i in range(4): A(f"v_fmac_f32 v{52+i}, v{56+i}, v49")
    A("s_nop 0\nv_permlane32_swap_b32 v52, v53\nv_permlane32_swap_b32 v54, v55\nv_add_f32 v52, v52, v53\nv_add_f32 v54, v54, v55\ns_nop 1\nv_permlane16_swap_b32 v52, v54\nv_add_f32 v52, v52, v54\ns_nop 1")
    A("v_add_f32_dpp v52, v52, v52 row_ror:8 row_mask:0xf bank_mask:0xf")
    A("v_bfi_b32 v52, s61, v20, v52")
    A("s_mov_b32 exec_lo, 0x00ff00ff\ns_mov_b32 exec_hi, 0x00ff00ff\nbuffer_store_dword v52, v21, s[48:51], 0 offen sc0 sc1\ns_mov_b64 exec, -1")
    A("s_and_b32 s37, s3, 7\ns_cmp_lg_u32 s37, 0\ns_cbranch_scc1 L_nostat")
    A("s_waitcnt lgkmcnt(0)\nv_sub_f32 v50, v50, v32\nv_exp_f32 v50, v50\ns_nop 0\nv_mul_f32 v50, v50, v51\ns_nop 1")
    for sh in (8, 4, 2, 1):
        A(f"v_add_f32_dpp v50, v50, v50 row_ror:{sh} row_mask:0xf bank_mask:0xf\ns_nop 1")
    A("s_mov_b32 exec_lo, 0\nv_mov_b32 v32, v50\ns_mov_b64 exec, -1\nv_bfi_b32 v32, s61, v20, v32")
    A("s_lshl_b32 s37, s3, 1\ns_add_u32 s36, s36, s37\ns_add_u32 s36, s36, 2048\nv_lshlrev_b32 v21, 2, v19\nv_add_u32 v21, s36, v21")
    A("s_mov_b32 exec_lo, 0x00010001\ns_mov_b32 exec_hi, 0x00010001\nbuffer_store_dword v32, v21, s[48:51], 0 offen sc0 sc1\ns_mov_b64 exec, -1")
    A("L_nostat:")
    stamp(7)
    A("s_cmp_eq_u32 s3, 0\ns_cbranch_scc1 L_hop1\ns_cmp_ge_u32 s3, 12\ns_cbranch_scc1 L_pre\ns_branch L_bar2")

    A("L_hop1:")
    A(f"v_lshrrev_b32 v13, 3, v2\nv_bfe_u32 v14, v2, 1, 2\nv_lshl_add_u32 v13, v14, 3, v13\nv_mov_b32 v15, {8*P1S}\nv_mul_lo_u32 v13, v13, v15")
    A(f"s_mul_i32 s36, s28, {P1S}\ns_add_u32 s36, s36, {P1}\ns_lshl_b32 s37, s29, 6\ns_add_u32 s37, s37, s36\nv_and_b32 v15, 1, v2\nv_lshl_add_u32 v15, v15, 5, v13\nv_add_u32 v15, s37, v15")
    A("s_lshr_b32 s37, s29, 4\ns_lshl_b32 s37, s37, 4\ns_add_u32 s36, s36, s37\ns_add_u32 s36, s36, 2048\nv_add_u32 v13, s36, v13")
    A(f"v_lshlrev_b32 v16, 6, v14\nv_and_b32 v17, 1, v2\nv_lshl_add_u32 v16, v17, 5, v16\nv_lshl_add_u32 v16, v19, 2, v16\ns_mov_b32 s61, 0")
    A("L_p1:")
    A("buffer_load_dwordx4 v[32:35], v15, s[48:51], 0 offen sc0 sc1\nbuffer_load_dwordx4 v[36:39], v15, s[48:51], 0 offen offset:16 sc0 sc1\nbuffer_load_dwordx4 v[40:43], v13, s[48:51], 0 offen sc0 sc1")
    A("s_add_u32 s61, s61, 1\ns_waitcnt vmcnt(0)")
    tagchk(32, "v44", "v45", True); tagchk(36, "v44", "v45", False); tagchk(40, "v44", "v45", False)
    A(f"s_cmp_gt_u32 s61, {SPIN_MAX}\ns_cbranch_scc1 L_p1got\ns_cmp_lg_u64 s[62:63], 0\ns_cbranch_scc1 L_p1")
    A("L_p1got:")
    stamp(8)
    A("v_and_b32 v40, s60, v40\nv_mov_b32 v44, v40\nv_mov_b32 v45, v40\ns_nop 1\nv_permlane32_swap_b32 v44, v45\nv_max_f32 v44, v44, v45\nv_mov_b32 v45, v44\ns_nop 1\nv_permlane16_swap_b32 v44, v45\nv_max_f32 v44, v44, v45\ns_nop 1")
    A("v_max_f32_dpp v44, v44, v44 row_ror:8 row_mask:0xf bank_mask:0xf\nv_sub_f32 v40, v40, v44\nv_exp_f32 v40, v40\ns_nop 0")
    A("v_mul_f32 v41, v41, v40")
    for i in range(8): A(f"v_mul_f32 v{32+i}, v{32+i}, v40")
    A("v_mov_b32 v42, v41\ns_nop 0")
    A("v_permlane32_swap_b32 v32, v33\nv_permlane32_swap_b32 v34, v35\nv_permlane32_swap_b32 v36, v37\nv_permlane32_swap_b32 v38, v39\nv_permlane32_swap_b32 v41, v42")
    A("v_add_f32 v32, v32, v33\nv_add_f32 v34, v34, v35\nv_add_f32 v36, v36, v37\nv_add_f32 v38, v38, v39\nv_add_f32 v41, v41, v42\nv_mov_b32 v42, v41\ns_nop 0")
    A("v_permlane16_swap_b32 v32, v34\nv_permlane16_swap_b32 v36, v38\nv_permlane16_swap_b32 v41, v42")
    A("v_add_f32 v32, v32, v34\nv_add_f32 v36, v36, v38\nv_add_f32 v41, v41, v42\ns_nop 0")
    A("v_add_f32_dpp v32, v32, v32 row_ror:8 row_mask:0xf bank_mask:0xf\nv_add_f32_dpp v36, v36, v36 row_ror:8 row_mask:0xf bank_mask:0xf\nv_add_f32_dpp v41, v41, v41 row_ror:8 row_mask:0xf bank_mask:0xf")
    A("v_rcp_f32 v41, v41\ns_nop 0\nv_mul_f32 v32, v32, v41\nv_mul_f32 v36, v36, v41\nv_cvt_pk_bf16_f32 v32, v32, v32\nv_cvt_pk_bf16_f32 v36, v36, v36")
    A(f"ds_write_b32 v16, v32 offset:{OL}\nds_write_b32 v16, v36 offset:{OL+16}")
    A("s_branch L_bar2")

    A("L_pre:")
    A("s_and_b32 s36, s3, 3")
    A("v_bfe_u32 v15, v2, 3, 1\nv_lshlrev_b32 v16, 6, v15\nv_lshl_add_u32 v16, v11, 4, v16")
    A(f"v_lshrrev_b32 v17, 1, v11\nv_lshlrev_b32 v18, 2, v17\nds_read2_b32 v[22:23], v18 offset0:{GL//4 % 256} offset1:{GL//4 % 256 + 2}" if False else
      f"v_lshrrev_b32 v17, 1, v11\nv_lshlrev_b32 v18, 2, v17\nds_read_b32 v22, v18 offset:{GL}\nds_read_b32 v23, v18 offset:{GL+8}")
    A(f"s_mul_i32 s60, s2, {P2S}\ns_add_u32 s60, s60, {P2}\ns_lshl_b32 s61, s36, 9\ns_add_u32 s60, s60, s61")
    A("v_mul_u32_u24 v17, 1792, v17\nv_lshl_add_u32 v17, v12, 5, v17\nv_and_b32 v18, 1, v11\nv_lshl_add_u32 v17, v18, 4, v17\nv_add_u32 v17, s60, v17")
    for i in range(8): A(f"v_mov_b32 v{24+i}, 0")
    A("s_sub_u32 s60, s29, 14\ns_cmp_ge_u32 s60, 14\ns_cbranch_scc1 L_noffn")
    A(f"ds_read_b128 v[96:99], v16 offset:{HL}\nds_read_b128 v[100:103], v16 offset:{HL+128}\ns_waitcnt lgkmcnt(0)")
    for bp in range(2):
        for kq in range(4):
            for r in range(4): A(f"v_and_b32 v{32+16*bp+4*kq+r}, v{96+4*bp+kq}, v{5+r}")
    A("v_sub_f32 v20, 1.0, v22\nv_sub_f32 v21, 1.0, v23\nv_cvt_pk_bf16_f32 v20, 0, v20\nv_cvt_pk_bf16_f32 v21, 0, v21\ns_waitcnt vmcnt(1)")
    for kq in range(4):
        for bp in range(2):
            c = "0" if kq == 0 else f"v[{24+4*bp}:{27+4*bp}]"
            A(f"v_mfma_f32_16x16x32_bf16 v[{24+4*bp}:{27+4*bp}], v[{32+16*bp+4*kq}:{35+16*bp+4*kq}], v[{80+4*kq}:{83+4*kq}], {c}")
    A("s_nop 7")
    for i in range(8): A(f"v_mul_f32 v{24+i}, v{24+i}, v{20+i//4}")
    A("L_noffn:")
    A("s_and_b32 s60, s33, 0xff\ns_bfe_u32 s61, s33, 0x80008\ns_bfe_u32 s64, s33, 0x80010\ns_lshr_b32 s65, s33, 24\nv_mov_b32 v9, 0xff")
    A("s_cmp_eq_u32 s36, 3\ns_cselect_b32 s66, 0x00ff00ff, -1\ns_waitcnt vmcnt(0)")
    A("L_bar2:")
    A("s_waitcnt lgkmcnt(0)\ns_barrier")
    stamp(9)
    A("s_cmp_lt_u32 s3, 12\ns_cbranch_scc1 L_hop2")
    A(f"ds_read_b128 v[96:99], v16 offset:{OL}\nds_read_b128 v[100:103], v16 offset:{OL+128}")
    for bp in range(2):
        A(f"s_waitcnt lgkmcnt({1-bp})")
        for kq in range(4):
            for r in range(4): A(f"v_and_b32 v{32+16*bp+4*kq+r}, v{96+4*bp+kq}, v{5+r}")
        if bp == 0: A("s_nop 0")
        for kq in range(4):
            c = "0" if kq == 0 else f"v[{104+4*bp}:{107+4*bp}]"
            A(f"v_mfma_f32_16x16x32_bf16 v[{104+4*bp}:{107+4*bp}], v[{32+16*bp+4*kq}:{35+16*bp+4*kq}], v[{64+4*kq}:{67+4*kq}], {c}")
    for i in range(4): A(f"v_fmac_f32 v{24+i}, v{104+i}, v22")
    for i, sr in enumerate(("s60", "s61", "s64", "s65")): A(f"v_bfi_b32 v{24+i}, v9, {sr}, v{24+i}")
    for i in range(4): A(f"v_fmac_f32 v{28+i}, v{108+i}, v23")
    for i, sr in enumerate(("s60", "s61", "s64", "s65")): A(f"v_bfi_b32 v{28+i}, v9, {sr}, v{28+i}")
    A("s_mov_b32 exec_lo, s66\ns_mov_b32 exec_hi, s66\nbuffer_store_dwordx4 v[24:27], v17, s[48:51], 0 offen sc0 sc1\nbuffer_store_dwordx4 v[28:31], v17, s[48:51], 0 offen offset:3584 sc0 sc1\ns_mov_b64 exec, -1")
    stamp(10)

    A("L_hop2:")
    A("s_cmp_ge_u32 s2, 112\ns_cbranch_scc1 L_fin")
    A(f"s_lshl_b32 s36, s3, 4\nv_lshrrev_b32 v13, 2, v2\nv_add_u32 v13, s36, v13\nv_mul_u32_u24 v13, {P2S}, v13\nv_and_b32 v14, 3, v2\nv_lshl_add_u32 v13, v14, 4, v13")
    A(f"s_lshl_b32 s36, s2, 6\ns_add_u32 s36, s36, {P2}\nv_add_u32 v13, s36, v13")
    A(f"v_lshl_add_u32 v15, v14, 2, v19\nv_lshlrev_b32 v15, 6, v15\ns_lshl_b32 s36, s3, 2\nv_add_u32 v15, s36, v15\ns_mov_b32 s61, 0")
    A("L_p2:")
    A("buffer_load_dwordx4 v[32:35], v13, s[48:51], 0 offen sc0 sc1\ns_add_u32 s61, s61, 1\ns_waitcnt vmcnt(0)")
    tagchk(32, "v44", "v45", True)
    A(f"s_cmp_gt_u32 s61, {SPIN_MAX}\ns_cbranch_scc1 L_p2got\ns_cmp_lg_u64 s[62:63], 0\ns_cbranch_scc1 L_p2")
    A("L_p2got:")
    stamp(11)
    A("v_permlane32_swap_b32 v32, v33\nv_permlane32_swap_b32 v34, v35\nv_add_f32 v32, v32, v33\nv_add_f32 v34, v34, v35\ns_nop 1\nv_permlane16_swap_b32 v32, v34\nv_add_f32 v32, v32, v34\ns_nop 1")
    A("v_add_f32_dpp v32, v32, v32 row_ror:4 row_mask:0xf bank_mask:0xf\ns_nop 1\nv_add_f32_dpp v32, v32, v32 row_ror:8 row_mask:0xf bank_mask:0xf")
    A(f"s_mov_b32 exec_lo, 0x000f000f\ns_mov_b32 exec_hi, 0x000f000f\nds_write_b32 v15, v32 offset:{RD}\ns_mov_b64 exec, -1")
    A("s_waitcnt lgkmcnt(0)\ns_barrier\ns_cmp_lg_u32 s3, 0\ns_cbranch_scc1 L_fin")
    A(f"v_lshlrev_b32 v13, 6, v12\nv_lshl_add_u32 v13, v11, 4, v13\nds_read_b128 v[32:35], v13 offset:{RD}")
    srd(52, 22, 23, None, 3584)
    A("s_lshl_b32 s36, s2, 5\nv_lshlrev_b32 v14, 1, v12\nv_add_u32 v14, s36, v14\ns_waitcnt lgkmcnt(0)")
    A("v_add_f32 v32, v32, v33\nv_add_f32 v34, v34, v35\nv_add_f32 v32, v32, v34\nv_mov_b32 v33, v32\ns_nop 1\nv_permlane32_swap_b32 v32, v33\nv_add_f32 v32, v32, v33\nv_mov_b32 v33, v32\ns_nop 1\nv_permlane16_swap_b32 v32, v33\nv_add_f32 v32, v32, v33\nv_cvt_pk_bf16_f32 v32, v32, v32")
    A("s_mov_b64 exec, 0xffff\nbuffer_store_short v32, v14, s[52:55], 0 offen\ns_mov_b64 exec, -1")
    A("s_cmp_lg_u32 s2, 0\ns_cbranch_scc1 L_fin")
    A("v_mov_b32 v13, 0\nv_mov_b32 v14, s33\ns_mov_b64 exec, 1\nbuffer_store_dword v14, v13, s[48:51], 0 offen\ns_mov_b64 exec, -1")
    A("L_fin:")
    if stamps:
        stamp(12)
        A("s_waitcnt lgkmcnt(0)")
        A("s_lshl_b32 s36, s2, 4\ns_add_u32 s36, s36, s3\ns_lshl_b32 s36, s36, 7\ns_add_u32 s36, s36, 0x10000000\ns_add_u32 s26, s26, s36\ns_addc_u32 s27, s27, 0\nv_mov_b32 v1, 0\ns_mov_b64 exec, 1")
        for i in range(13):
            A(f"v_mov_b32 v2, s{70+2*i}\nv_mov_b32 v3, s{71+2*i}\nglobal_store_dwordx2 v1, v[2:3], s[26:27] offset:{8*i}\ns_nop 0")
    A("L_end:\ns_endpgm")
    L.append(f'.section .rodata,"a"\n.p2align 6\n.amdhsa_kernel {KN}\n  .amdhsa_next_free_vgpr 128\n  .amdhsa_next_free_sgpr 102\n  .amdhsa_accum_offset 128\n  .amdhsa_group_segment_fixed_size 0\n  .amdhsa_kernarg_size 96\n  .amdhsa_user_sgpr_count 2\n  .amdhsa_user_sgpr_kernarg_segment_ptr 1\n  .amdhsa_system_sgpr_workgroup_id_x 1\n.end_amdhsa_kernel')
    return "\n".join(L) + "\n"

if __name__ == "__main__":
    ref = open("gated_mix__sliding_block_cached__dense_activation_relu__decode.s.ref").read()
    header = "".join(l + "\n" for l in ref.split("\n") if l.startswith(";") and "@launch" not in l)
    out = sys.argv[1]
    kw = dict(a.split("=", 1) for a in sys.argv[2:])
    kw["stamps"] = kw.get("stamps", "0") == "1"
    open(out, "w").write(gen(header=header, **kw))
```

```python
import sys
KN = "gated_mix__sliding_block_cached__dense_activation_relu__decode_kernel"

XA, XB, WQ, W12, GW, WO, QL = 0x0000, 0x1000, 0x2000, 0x5800, 0x9000, 0x9400, 0xCC00
ST, FL, GL, HL, OL = 0xD000, 0xD400, 0xD440, 0xD500, 0xD600
OP, OPS = 0xE000, 2112
RD = XA
LDS_BYTES = 0x16800
QM, HM, P1, P1S, P2, P2S = 0x1000, 0x42000, 0x60000, 2176, 0x100000, 7168
WS_USED = 0x300000
SPIN_MAX = 0x40000

def gen(stamps=False, dbg="0", wflags="", kvflags="nt", header="", burst="2", gap="v_mov_b32 v9, v9;v_mov_b32 v9, v9"):
    burst = int(burst); gap = gap.replace(";", "\n")
    L = []
    def A(s):
        for line in s.split("\n"):
            line = line.strip()
            if not line: continue
            L.append(line if line.endswith(":") else "    " + line)
    nst = [0]
    def stamp(i):
        if stamps:
            A(f"s_memrealtime s[{70+2*i}:{71+2*i}]")
    def srd(d, lo, hi, off, size):
        if off is None:
            A(f"s_mov_b32 s{d}, s{lo}\ns_and_b32 s{d+1}, s{hi}, 0xffff")
        else:
            A(f"s_add_u32 s{d}, s{lo}, {off}\ns_addc_u32 s{d+1}, s{hi}, 0\ns_and_b32 s{d+1}, s{d+1}, 0xffff")
        A(f"s_mov_b32 s{d+2}, {size}\ns_mov_b32 s{d+3}, 0x20000")
    def dma(voff, srdn, ldsaddr, soff):
        A(f"s_mov_b32 m0, {ldsaddr}\ns_mov_b32 s60, {soff}")
        A(f"buffer_load_dwordx4 {voff}, s[{srdn}:{srdn+3}], s60 offen {wflags} lds")
    def tagchk(d, t0, t1, first):
        A(f"v_perm_b32 {t0}, v{d+1}, v{d}, s38\nv_perm_b32 {t1}, v{d+3}, v{d+2}, s39\nv_or_b32 {t0}, {t0}, {t1}")
        if first: A(f"v_cmp_ne_u32 s[62:63], s33, {t0}")
        else: A(f"v_cmp_ne_u32 vcc, s33, {t0}\ns_or_b64 s[62:63], s[62:63], vcc")

    L.append(header.rstrip("\n"))
    L.append(f"; @launch grid=(256,1,1) block=(1024,1,1) lds={LDS_BYTES}")
    L.append('.amdgcn_target "amdgcn-amd-amdhsa--gfx950"\n.text\n.globl %s\n.p2align 8\n.type %s,@function\n%s:' % (KN, KN, KN))
    A("s_cmp_ge_u32 s2, 256\ns_cbranch_scc1 L_end")
    if stamps:
        for i in range(1, 13): A(f"s_mov_b64 s[{70+2*i}:{71+2*i}], 0")
    stamp(0)
    A("s_load_dwordx16 s[4:19], s[0:1], 0\ns_load_dwordx8 s[20:27], s[0:1], 64")
    A("v_lshrrev_b32 v1, 6, v0\nv_and_b32 v2, 63, v0\nv_mov_b32 v9, 0\nv_readfirstlane_b32 s3, v1")
    A(f"v_mov_b32 v10, {FL}\nds_write_b32 v10, v9")
    A("s_and_b32 s28, s2, 7\ns_lshr_b32 s29, s2, 3\ns_lshr_b32 s30, s29, 3\ns_and_b32 s31, s29, 7")
    A("s_lshl_b32 s34, s30, 3\ns_add_u32 s34, s34, s28\ns_lshl_b32 s34, s34, 22\ns_lshl_b32 s35, s31, 17\ns_add_u32 s34, s34, s35")
    A("s_lshl_b32 s35, s3, 12\ns_add_u32 s34, s34, s35\ns_add_u32 s34, s34, 0x300000\ns_sub_u32 s35, 0x8000000, s34")
    A("v_lshrrev_b32 v11, 4, v2\nv_and_b32 v12, 15, v2")
    A("v_and_b32 v3, 7, v2\nv_lshlrev_b32 v3, 9, v3\nv_lshl_add_u32 v3, v11, 4, v3\nv_bfe_u32 v13, v2, 3, 1\nv_lshl_add_u32 v3, v13, 16, v3")
    A("v_lshlrev_b32 v4, 4, v12\nv_and_b32 v13, 1, v11\nv_lshl_add_u32 v4, v13, 11, v4\nv_lshrrev_b32 v13, 1, v11\nv_lshl_add_u32 v4, v13, 16, v4")
    A("v_and_b32 v13, 1, v2\nv_lshlrev_b32 v13, 4, v13\nv_mov_b32 v14, 0xffff\nv_lshlrev_b32 v14, v13, v14\nv_bfe_u32 v13, v2, 1, 2")
    for r in range(4):
        A(f"v_cmp_eq_u32 vcc, {r}, v13\ns_nop 1\nv_cndmask_b32 v{5+r}, 0, v14, vcc")
    A("s_mov_b32 s38, 0x0c0c0400\ns_mov_b32 s39, 0x04000c0c")
    A("s_waitcnt lgkmcnt(0)")
    A("s_load_dword s32, s[26:27], 0")
    srd(40, 6, 7, "s34", "s35")
    srd(44, 8, 9, "s34", "s35")
    srd(48, 26, 27, None, WS_USED)
    A("s_cmp_eq_u32 s3, 1\ns_cbranch_scc1 L_w1\ns_cmp_lg_u32 s3, 0\ns_cbranch_scc1 L_kv")
    A("L_w0:")
    A("s_setprio 3")
    srd(52, 10, 11, None, 448*8192)
    A(f"s_movk_i32 s64, 8192\ns_mul_i32 s65, s30, {112*8192}\ns_lshl_b32 s36, s28, 10\ns_add_u32 s65, s65, s36\ns_lshl_b32 s36, s31, 7\ns_add_u32 s65, s65, s36")
    A(f"s_movk_i32 s66, {WQ}\ns_movk_i32 s67, {XA}\ns_mov_b32 s68, s30")
    A(f"s_lshl_b32 s54, s28, 15\ns_lshl_b32 s36, s30, 11\ns_add_u32 s98, s54, s36\ns_lshl_b32 s36, s31, 8\ns_add_u32 s98, s98, s36\ns_add_u32 s98, s98, {QM}\ns_movk_i32 s99, 8192\ns_mov_b32 s54, {448*8192}")
    A("s_branch L_tile")
    A("L_w1:")
    A("s_setprio 2")
    srd(52, 16, 17, None, 448*3584)
    A(f"s_movk_i32 s64, 3584\ns_lshr_b32 s68, s28, 1\ns_and_b32 s36, s28, 1\ns_mul_i32 s36, s36, 14\ns_add_u32 s36, s36, s29\ns_mul_i32 s65, s68, {112*3584}\ns_lshl_b32 s37, s36, 7\ns_add_u32 s65, s65, s37")
    A(f"s_movk_i32 s66, {W12}\ns_movk_i32 s67, {XB}")
    A(f"s_mul_i32 s98, s68, 7168\ns_lshl_b32 s36, s36, 8\ns_add_u32 s98, s98, s36\ns_add_u32 s98, s98, {HM}\ns_movk_i32 s99, 28672")
    srd(56, 20, 21, None, 896)
    A("v_lshlrev_b32 v14, 4, v2")
    dma("v14", 56, GW, 0)
    A("s_cmp_ge_u32 s29, 14\ns_cbranch_scc1 L_xcopy")
    A("L_tile:")
    A("v_lshrrev_b32 v13, 3, v2\nv_mul_lo_u32 v13, v13, s64\nv_and_b32 v14, 7, v2\nv_lshl_add_u32 v13, v14, 4, v13\ns_lshl_b32 s37, s64, 3\ns_mov_b32 s60, s65\ns_mov_b32 m0, s66")
    for i in range(14):
        A(f"buffer_load_dwordx4 v13, s[52:55], s60 offen {wflags} lds")
        if i < 13: A("s_add_u32 m0, m0, 1024\ns_add_u32 s60, s60, s37")
    A("L_xcopy:")
    srd(56, 4, 5, None, 3584)
    A("v_lshlrev_b32 v14, 4, v2\ns_mov_b32 m0, s67\ns_nop 0")
    for i in range(4):
        A(f"buffer_load_dwordx4 v14, s[56:59], 0 offen offset:{i*1024} lds")
    A("L_kv:")
    A("s_barrier")
    n = 0
    for kk in range(8):
        A(f"buffer_load_dwordx4 v[{64+4*kk}:{67+4*kk}], v3, s[40:43], 0 offen offset:{kk*64} {kvflags}")
        n += 1
        if n % burst == 0: A(gap)
    for t in range(4):
        for hf in range(2):
            i = 2*t + hf
            A(f"buffer_load_dwordx4 v[{96+4*i}:{99+4*i}], v4, s[44:47], 0 offen offset:{t*512+hf*256} {kvflags}")
            n += 1
            if n % burst == 0 and n < 16: A(gap)
    stamp(1)
    A("s_waitcnt lgkmcnt(0)")
    A("s_mul_i32 s33, s32, 1664525\ns_add_u32 s33, s33, 1013904223")
    A("s_cmp_eq_u32 s3, 0\ns_cbranch_scc1 L_q\ns_cmp_eq_u32 s3, 1\ns_cbranch_scc1 L_h\ns_cmp_eq_u32 s3, 3\ns_cbranch_scc1 L_hg\ns_branch L_waitq")

    A("L_h:")
    A("s_cmp_ge_u32 s29, 14\ns_cbranch_scc1 L_gate")
    A("L_q:")
    A("v_lshrrev_b32 v13, 2, v12\nv_lshl_add_u32 v13, v11, 2, v13\nv_lshlrev_b32 v13, 7, v13\nv_and_b32 v14, 3, v12\nv_lshl_add_u32 v13, v14, 3, v13\nv_add_u32 v13, s66, v13")
    A("s_mul_i32 s36, s68, 224\ns_add_u32 s36, s36, s67\nv_and_b32 v14, 3, v2\nv_mul_u32_u24 v14, 896, v14\nv_lshl_add_u32 v14, v11, 3, v14\nv_add_u32 v14, s36, v14")
    A("v_mul_lo_u32 v15, v12, s99\nv_lshl_add_u32 v15, v11, 4, v15\nv_add_u32 v15, s98, v15")
    A("s_and_b32 s36, s33, 0xff\ns_bfe_u32 s37, s33, 0x80008\ns_bfe_u32 s60, s33, 0x80010\ns_lshr_b32 s61, s33, 24\nv_mov_b32 v9, 0xff")
    A("s_waitcnt vmcnt(16)")
    stamp(2)
    def rd(ks):
        b = 32 + (ks % 3) * 10
        A(f"ds_read_b64 v[{b}:{b+1}], v14 offset:{ks*32}")
        for cb in range(4): A(f"ds_read_b64_tr_b16 v[{b+2+2*cb}:{b+3+2*cb}], v13 offset:{ks*2048+cb*32}")
    rd(0); rd(1)
    for ks in range(7):
        if ks + 2 < 7: rd(ks + 2)
        A(f"s_waitcnt lgkmcnt({min(2, 6-ks)*5})")
        b = 32 + (ks % 3) * 10
        for cb in range(4):
            c = "0" if ks == 0 else f"v[{16+4*cb}:{19+4*cb}]"
            A(f"v_mfma_f32_16x16x16_bf16 v[{16+4*cb}:{19+4*cb}], v[{b+2+2*cb}:{b+3+2*cb}], v[{b}:{b+1}], {c}")
    A("s_nop 4\ns_mov_b32 exec_lo, 0x000f000f\ns_mov_b32 exec_hi, 0x000f000f")
    for cb in range(4):
        for i, sr in enumerate(("s36", "s37", "s60", "s61")): A(f"v_bfi_b32 v{16+4*cb+i}, v9, {sr}, v{16+4*cb+i}")
    for cb in range(4):
        A(f"buffer_store_dwordx4 v[{16+4*cb}:{19+4*cb}], v15, s[48:51], 0 offen offset:{cb*64} sc0 sc1")
    A("s_mov_b64 exec, -1")
    stamp(3)
    A("s_cmp_eq_u32 s3, 1\ns_cbranch_scc1 L_gate")
    A(f"s_lshl_b32 s36, s28, 15\ns_lshl_b32 s37, s30, 13\ns_add_u32 s36, s36, s37\ns_add_u32 s36, s36, {QM}\ns_add_u32 s37, s36, 4096")
    A("v_lshlrev_b32 v13, 4, v2\ns_mov_b32 s61, 0")
    A("L_qpoll:")
    for i in range(8):
        A(f"buffer_load_dwordx4 v[{32+4*i}:{35+4*i}], v13, s[48:51], s{36+i//4} offen offset:{(i%4)*1024} sc0 sc1")
    A("s_add_u32 s61, s61, 1\ns_waitcnt vmcnt(0)")
    for i in range(8): tagchk(32+4*i, "v14", "v15", i == 0)
    A(f"s_cmp_gt_u32 s61, {SPIN_MAX}\ns_cbranch_scc1 L_qgot\ns_cmp_lg_u64 s[62:63], 0\ns_cbranch_scc1 L_qpoll")
    A("L_qgot:")
    for i in range(8): A(f"v_add_f32 v{32+i}, v{32+i}, v{40+i}\nv_add_f32 v{48+i}, v{48+i}, v{56+i}")
    for i in range(8): A(f"v_add_f32 v{32+i}, v{32+i}, v{48+i}")
    for i in range(4): A(f"v_cvt_pk_bf16_f32 v{32+i}, v{32+2*i}, v{33+2*i}")
    A(f"v_lshlrev_b32 v13, 3, v2\nds_write_b64 v13, v[32:33] offset:{QL}\nds_write_b64 v13, v[34:35] offset:{QL+512}")
    A("v_mov_b32 v14, 1\ns_waitcnt lgkmcnt(0)\nds_write_b32 v10, v14")
    A("s_setprio 0\ns_branch L_main")

    A("L_gate:")
    A(f"v_and_b32 v14, 3, v2\nv_mul_u32_u24 v14, 896, v14\nv_lshl_add_u32 v14, v11, 4, v14\nv_lshlrev_b32 v13, 4, v11")
    A("s_nop 0\ns_waitcnt vmcnt(16)")
    for k0 in range(0, 14, 4):
        ks = list(range(k0, min(k0+4, 14)))
        for n, kk in enumerate(ks):
            A(f"ds_read_b128 v[{32+8*n}:{35+8*n}], v13 offset:{GW+kk*64}\nds_read_b128 v[{36+8*n}:{39+8*n}], v14 offset:{XB+kk*64}")
        A("s_waitcnt lgkmcnt(0)")
        for n, kk in enumerate(ks):
            c = "0" if kk == 0 else "v[20:23]"
            A(f"v_mfma_f32_16x16x32_bf16 v[20:23], v[{32+8*n}:{35+8*n}], v[{36+8*n}:{39+8*n}], {c}")
    A("s_nop 7")
    A("v_cvt_pk_bf16_f32 v20, 0, v20\nv_mul_f32 v20, 0xbfb8aa3b, v20\nv_exp_f32 v20, v20\ns_nop 0\nv_add_f32 v20, 1.0, v20\nv_rcp_f32 v20, v20\ns_nop 0\nv_cvt_pk_bf16_f32 v20, 0, v20")
    A(f"v_lshlrev_b32 v14, 2, v12\ns_mov_b64 exec, 0xf\nds_write_b32 v14, v20 offset:{GL}\ns_mov_b64 exec, -1")
    A("s_setprio 0\ns_branch L_waitq")

    A("L_hg:")
    A("s_sub_u32 s37, s29, 14\ns_cmp_ge_u32 s37, 14\ns_cbranch_scc1 L_waitq")
    A(f"v_bfe_u32 v14, v2, 2, 2\nv_lshl_add_u32 v13, v14, 2, v11\nv_mul_u32_u24 v13, 7168, v13\nv_and_b32 v15, 3, v2\nv_lshl_add_u32 v13, v15, 4, v13\ns_mul_i32 s36, s28, 14\ns_add_u32 s36, s36, s37\ns_lshl_b32 s36, s36, 6\ns_add_u32 s36, s36, {HM}")
    A("v_lshrrev_b32 v16, 1, v11\nv_and_b32 v17, 1, v11\nv_lshl_add_u32 v16, v17, 1, v16\nv_lshlrev_b32 v16, 2, v16\nv_lshl_add_u32 v16, v12, 4, v16\ns_mov_b32 s61, 0")
    A("L_hpoll:")
    A("buffer_load_dwordx4 v[32:35], v13, s[48:51], s36 offen sc0 sc1\ns_add_u32 s61, s61, 1\ns_waitcnt vmcnt(0)")
    tagchk(32, "v14", "v15", True)
    A(f"s_cmp_gt_u32 s61, {SPIN_MAX}\ns_cbranch_scc1 L_hgot\ns_cmp_lg_u64 s[62:63], 0\ns_cbranch_scc1 L_hpoll")
    A("L_hgot:")
    A("v_permlane32_swap_b32 v32, v33\nv_permlane32_swap_b32 v34, v35\nv_add_f32 v32, v32, v33\nv_add_f32 v34, v34, v35\ns_nop 1\nv_permlane16_swap_b32 v32, v34\nv_add_f32 v32, v32, v34")
    A(f"v_max_f32 v32, 0, v32\nv_cvt_pk_bf16_f32 v32, v32, v32\nds_write_b32 v16, v32 offset:{HL}")

    A("L_waitq:")
    A("s_mov_b32 s61, 0")
    A("L_qspin:")
    A(f"ds_read_b32 v14, v10\ns_add_u32 s61, s61, 1\ns_waitcnt lgkmcnt(0)\nv_readfirstlane_b32 s36, v14\ns_cmp_gt_u32 s61, {SPIN_MAX*4}\ns_cbranch_scc1 L_main\ns_cmp_lg_u32 s36, 0\ns_cbranch_scc1 L_main\ns_sleep 2\ns_branch L_qspin")
    A("L_main:")
    stamp(4)
    A(f"v_bfe_u32 v13, v2, 3, 1\nv_lshlrev_b32 v13, 9, v13\nv_lshl_add_u32 v13, v11, 4, v13")
    for kk in range(8):
        A(f"ds_read_b128 v[{32+4*kk}:{35+4*kk}], v13 offset:{QL+kk*64}")
    A("s_waitcnt vmcnt(8) lgkmcnt(0)")
    for kk in range(8):
        c = "0" if kk == 0 else "v[16:19]"
        A(f"v_mfma_f32_16x16x32_bf16 v[16:19], v[{64+4*kk}:{67+4*kk}], v[{32+4*kk}:{35+4*kk}], {c}")
    A("s_cmp_lt_u32 s3, 12\ns_cbranch_scc1 L_now")
    srd(52, 12, 13, None, 4096*896)
    srd(56, 18, 19, None, 1792*896)
    A("s_sub_u32 s37, s29, 14\ns_cmp_ge_u32 s37, 14\ns_cselect_b32 s58, 0, s58\ns_mul_i32 s65, s28, 14\ns_add_u32 s65, s65, s37\ns_mul_i32 s65, s65, 14336")
    A("s_lshl_b32 s64, s28, 5\ns_add_u32 s64, s64, s29\ns_mul_i32 s64, s64, 14336\ns_and_b32 s36, s3, 3\ns_lshl_b32 s36, s36, 8")
    A("v_mul_u32_u24 v14, 3584, v11\nv_lshl_add_u32 v14, v12, 4, v14\nv_add_u32 v14, s36, v14")
    for kq in range(4):
        A(f"buffer_load_dwordx4 v[{64+4*kq}:{67+4*kq}], v14, s[52:55], s64 offen offset:{kq*896} {wflags}")
    for kq in range(4):
        A(f"buffer_load_dwordx4 v[{80+4*kq}:{83+4*kq}], v14, s[56:59], s65 offen offset:{kq*896} {wflags}")
    A("L_now:")
    A("s_mov_b32 s36, 0x3db8aa3b\ns_mov_b32 s37, 0xffff0000\ns_nop 5")
    A("v_cvt_pk_bf16_f32 v20, v16, v17\nv_cvt_pk_bf16_f32 v21, v18, v19")
    A("v_lshlrev_b32 v16, 16, v20\nv_and_b32 v17, s37, v20\nv_lshlrev_b32 v18, 16, v21\nv_and_b32 v19, s37, v21")
    A("v_mul_f32 v16, s36, v16\nv_mul_f32 v17, s36, v17\nv_mul_f32 v18, s36, v18\nv_mul_f32 v19, s36, v19")
    A("v_max_f32 v20, v16, v17\nv_max3_f32 v20, v20, v18, v19\nv_mov_b32 v21, v20\ns_nop 1\nv_permlane32_swap_b32 v20, v21\nv_max_f32 v20, v20, v21\nv_mov_b32 v21, v20\ns_nop 1\nv_permlane16_swap_b32 v20, v21\nv_max_f32 v20, v20, v21")
    A("v_sub_f32 v16, v16, v20\nv_sub_f32 v17, v17, v20\nv_sub_f32 v18, v18, v20\nv_sub_f32 v19, v19, v20")
    A("v_exp_f32 v16, v16\nv_exp_f32 v17, v17\nv_exp_f32 v18, v18\nv_exp_f32 v19, v19")
    A("v_add_f32 v21, v16, v17\nv_add_f32 v22, v18, v19\nv_add_f32 v21, v21, v22")
    for t in range(4):
        A(f"v_cvt_pk_bf16_f32 v{16+t}, v{16+t}, v{16+t}")
    for t in range(4):
        for r in range(4):
            A(f"v_and_b32 v{32+4*t+r}, v{16+t}, v{5+r}")
    A("v_mov_b32 v22, v21\ns_nop 1\nv_permlane32_swap_b32 v21, v22\nv_add_f32 v21, v21, v22\nv_mov_b32 v22, v21\ns_nop 1\nv_permlane16_swap_b32 v21, v22\nv_add_f32 v21, v21, v22")
    A(f"s_lshl_b32 s36, s3, 2\nv_lshlrev_b32 v13, 3, v2\nv_add_u32 v13, s36, v13\ns_mov_b64 exec, 0x101\nds_write_b32 v13, v20 offset:{ST}\nds_write_b32 v13, v21 offset:{ST+128}\ns_mov_b64 exec, -1")
    A(f"s_mul_i32 s36, s3, {OPS}\nv_lshrrev_b32 v13, 1, v11\nv_lshlrev_b32 v13, 10, v13\nv_lshl_add_u32 v13, v12, 5, v13\nv_and_b32 v14, 1, v11\nv_lshl_add_u32 v13, v14, 4, v13\nv_add_u32 v13, s36, v13")
    def pv(extra):
        for t in range(4):
            A(f"s_waitcnt vmcnt({6-2*t+extra})")
            for hf in range(2):
                i = 2*t + hf
                c = "0" if t == 0 else f"v[{24+4*hf}:{27+4*hf}]"
                A(f"v_mfma_f32_16x16x32_bf16 v[{24+4*hf}:{27+4*hf}], v[{32+4*t}:{35+4*t}], v[{96+4*i}:{99+4*i}], {c}")
    A("s_cmp_lt_u32 s3, 12\ns_cbranch_scc1 L_pv0")
    pv(8)
    A("s_branch L_pv1\nL_pv0:")
    pv(0)
    A("L_pv1:")
    stamp(5)
    A("s_nop 6")
    A(f"ds_write_b128 v13, v[24:27] offset:{OP}\nds_write_b128 v13, v[28:31] offset:{OP+512}")
    A(f"s_lshr_b32 s36, s3, 3\ns_lshl_b32 s36, s36, 6\nv_mov_b32 v14, s36")
    A(f"v_lshrrev_b32 v15, 3, v2\nv_lshl_add_u32 v16, v15, 3, v14")
    A(f"v_mul_u32_u24 v15, {2*OPS}, v15\nv_and_b32 v17, 7, v2\nv_lshl_add_u32 v15, v17, 4, v15\ns_lshl_b32 s37, s3, 7\nv_add_u32 v15, s37, v15")
    A(f"v_lshl_add_u32 v18, v12, 2, v14")
    A("v_lshrrev_b32 v19, 1, v11\nv_and_b32 v20, 1, v11\nv_lshl_add_u32 v19, v20, 1, v19\nv_lshlrev_b32 v20, 3, v19\nv_lshrrev_b32 v20, v20, s33\nv_and_b32 v20, 0xff, v20")
    A(f"s_mul_i32 s36, s2, {P1S}\ns_add_u32 s36, s36, {P1}\ns_add_u32 s37, s37, s36\nv_lshlrev_b32 v21, 4, v17\nv_lshl_add_u32 v21, v19, 2, v21\nv_add_u32 v21, s37, v21")
    A("s_mov_b32 s60, 0xffffff00\ns_mov_b32 s61, 0xff")
    A("s_waitcnt lgkmcnt(0)\ns_barrier")
    stamp(6)
    for i in range(4):
        A(f"ds_read_b128 v[{32+4*i}:{35+4*i}], v14 offset:{ST+16*i}")
    A(f"ds_read_b64 v[48:49], v16 offset:{ST}\nds_read_b128 v[52:55], v15 offset:{OP}\nds_read_b128 v[56:59], v15 offset:{OP+OPS}")
    A(f"ds_read_b32 v50, v18 offset:{ST}\nds_read_b32 v51, v18 offset:{ST+128}")
    A("s_waitcnt lgkmcnt(5)")
    A("v_max3_f32 v32, v32, v33, v34\nv_max3_f32 v35, v35, v36, v37\nv_max3_f32 v38, v38, v39, v40\nv_max3_f32 v41, v41, v42, v43\nv_max3_f32 v44, v44, v45, v46")
    A("v_max3_f32 v32, v32, v35, v38\nv_max3_f32 v41, v41, v44, v47\nv_max_f32 v32, v32, v41\nv_and_b32 v32, s60, v32")
    A("s_waitcnt lgkmcnt(4)")
    A("v_sub_f32 v48, v48, v32\nv_sub_f32 v49, v49, v32\nv_exp_f32 v48, v48\nv_exp_f32 v49, v49")
    A("s_waitcnt lgkmcnt(2)")
    for i in range(4): A(f"v_mul_f32 v{52+i}, v{52+i}, v48")
    for i in range(4): A(f"v_fmac_f32 v{52+i}, v{56+i}, v49")
    A("s_nop 0\nv_permlane32_swap_b32 v52, v53\nv_permlane32_swap_b32 v54, v55\nv_add_f32 v52, v52, v53\nv_add_f32 v54, v54, v55\ns_nop 1\nv_permlane16_swap_b32 v52, v54\nv_add_f32 v52, v52, v54\ns_nop 1")
    A("v_add_f32_dpp v52, v52, v52 row_ror:8 row_mask:0xf bank_mask:0xf")
    A("v_bfi_b32 v52, s61, v20, v52")
    A("s_mov_b32 exec_lo, 0x00ff00ff\ns_mov_b32 exec_hi, 0x00ff00ff\nbuffer_store_dword v52, v21, s[48:51], 0 offen sc0 sc1\ns_mov_b64 exec, -1")
    A("s_and_b32 s37, s3, 7\ns_cmp_lg_u32 s37, 0\ns_cbranch_scc1 L_nostat")
    A("s_waitcnt lgkmcnt(0)\nv_sub_f32 v50, v50, v32\nv_exp_f32 v50, v50\ns_nop 0\nv_mul_f32 v50, v50, v51\ns_nop 1")
    for sh in (8, 4, 2, 1):
        A(f"v_add_f32_dpp v50, v50, v50 row_ror:{sh} row_mask:0xf bank_mask:0xf\ns_nop 1")
    A("s_mov_b32 exec_lo, 0\nv_mov_b32 v32, v50\ns_mov_b64 exec, -1\nv_bfi_b32 v32, s61, v20, v32")
    A("s_lshl_b32 s37, s3, 1\ns_add_u32 s36, s36, s37\ns_add_u32 s36, s36, 2048\nv_lshlrev_b32 v21, 2, v19\nv_add_u32 v21, s36, v21")
    A("s_mov_b32 exec_lo, 0x00010001\ns_mov_b32 exec_hi, 0x00010001\nbuffer_store_dword v32, v21, s[48:51], 0 offen sc0 sc1\ns_mov_b64 exec, -1")
    A("L_nostat:")
    stamp(7)
    A("s_cmp_eq_u32 s3, 0\ns_cbranch_scc1 L_hop1\ns_cmp_ge_u32 s3, 12\ns_cbranch_scc1 L_pre\ns_branch L_bar2")

    A("L_hop1:")
    A(f"v_lshrrev_b32 v13, 3, v2\nv_bfe_u32 v14, v2, 1, 2\nv_lshl_add_u32 v13, v14, 3, v13\nv_mov_b32 v15, {8*P1S}\nv_mul_lo_u32 v13, v13, v15")
    A(f"s_mul_i32 s36, s28, {P1S}\ns_add_u32 s36, s36, {P1}\ns_lshl_b32 s37, s29, 6\ns_add_u32 s37, s37, s36\nv_and_b32 v15, 1, v2\nv_lshl_add_u32 v15, v15, 5, v13\nv_add_u32 v15, s37, v15")
    A("s_lshr_b32 s37, s29, 4\ns_lshl_b32 s37, s37, 4\ns_add_u32 s36, s36, s37\ns_add_u32 s36, s36, 2048\nv_add_u32 v13, s36, v13")
    A(f"v_lshlrev_b32 v16, 6, v14\nv_and_b32 v17, 1, v2\nv_lshl_add_u32 v16, v17, 5, v16\nv_lshl_add_u32 v16, v19, 2, v16\ns_mov_b32 s61, 0")
    A("L_p1:")
    A("buffer_load_dwordx4 v[32:35], v15, s[48:51], 0 offen sc0 sc1\nbuffer_load_dwordx4 v[36:39], v15, s[48:51], 0 offen offset:16 sc0 sc1\nbuffer_load_dwordx4 v[40:43], v13, s[48:51], 0 offen sc0 sc1")
    A("s_add_u32 s61, s61, 1\ns_waitcnt vmcnt(0)")
    tagchk(32, "v44", "v45", True); tagchk(36, "v44", "v45", False); tagchk(40, "v44", "v45", False)
    A(f"s_cmp_gt_u32 s61, {SPIN_MAX}\ns_cbranch_scc1 L_p1got\ns_cmp_lg_u64 s[62:63], 0\ns_cbranch_scc1 L_p1")
    A("L_p1got:")
    stamp(8)
    A("v_and_b32 v40, s60, v40\nv_mov_b32 v44, v40\nv_mov_b32 v45, v40\ns_nop 1\nv_permlane32_swap_b32 v44, v45\nv_max_f32 v44, v44, v45\nv_mov_b32 v45, v44\ns_nop 1\nv_permlane16_swap_b32 v44, v45\nv_max_f32 v44, v44, v45\ns_nop 1")
    A("v_max_f32_dpp v44, v44, v44 row_ror:8 row_mask:0xf bank_mask:0xf\nv_sub_f32 v40, v40, v44\nv_exp_f32 v40, v40\ns_nop 0")
    A("v_mul_f32 v41, v41, v40")
    for i in range(8): A(f"v_mul_f32 v{32+i}, v{32+i}, v40")
    A("v_mov_b32 v42, v41\ns_nop 0")
    A("v_permlane32_swap_b32 v32, v33\nv_permlane32_swap_b32 v34, v35\nv_permlane32_swap_b32 v36, v37\nv_permlane32_swap_b32 v38, v39\nv_permlane32_swap_b32 v41, v42")
    A("v_add_f32 v32, v32, v33\nv_add_f32 v34, v34, v35\nv_add_f32 v36, v36, v37\nv_add_f32 v38, v38, v39\nv_add_f32 v41, v41, v42\nv_mov_b32 v42, v41\ns_nop 0")
    A("v_permlane16_swap_b32 v32, v34\nv_permlane16_swap_b32 v36, v38\nv_permlane16_swap_b32 v41, v42")
    A("v_add_f32 v32, v32, v34\nv_add_f32 v36, v36, v38\nv_add_f32 v41, v41, v42\ns_nop 0")
    A("v_add_f32_dpp v32, v32, v32 row_ror:8 row_mask:0xf bank_mask:0xf\nv_add_f32_dpp v36, v36, v36 row_ror:8 row_mask:0xf bank_mask:0xf\nv_add_f32_dpp v41, v41, v41 row_ror:8 row_mask:0xf bank_mask:0xf")
    A("v_rcp_f32 v41, v41\ns_nop 0\nv_mul_f32 v32, v32, v41\nv_mul_f32 v36, v36, v41\nv_cvt_pk_bf16_f32 v32, v32, v32\nv_cvt_pk_bf16_f32 v36, v36, v36")
    A(f"ds_write_b32 v16, v32 offset:{OL}\nds_write_b32 v16, v36 offset:{OL+16}")
    A("s_branch L_bar2")

    A("L_pre:")
    A("s_and_b32 s36, s3, 3")
    A("v_bfe_u32 v15, v2, 3, 1\nv_lshlrev_b32 v16, 6, v15\nv_lshl_add_u32 v16, v11, 4, v16")
    A(f"v_lshrrev_b32 v17, 1, v11\nv_lshlrev_b32 v18, 2, v17\nds_read2_b32 v[22:23], v18 offset0:{GL//4 % 256} offset1:{GL//4 % 256 + 2}" if False else
      f"v_lshrrev_b32 v17, 1, v11\nv_lshlrev_b32 v18, 2, v17\nds_read_b32 v22, v18 offset:{GL}\nds_read_b32 v23, v18 offset:{GL+8}")
    A(f"s_mul_i32 s60, s2, {P2S}\ns_add_u32 s60, s60, {P2}\ns_lshl_b32 s61, s36, 9\ns_add_u32 s60, s60, s61")
    A("v_mul_u32_u24 v17, 1792, v17\nv_lshl_add_u32 v17, v12, 5, v17\nv_and_b32 v18, 1, v11\nv_lshl_add_u32 v17, v18, 4, v17\nv_add_u32 v17, s60, v17")
    for i in range(8): A(f"v_mov_b32 v{24+i}, 0")
    A("s_sub_u32 s60, s29, 14\ns_cmp_ge_u32 s60, 14\ns_cbranch_scc1 L_noffn")
    A(f"ds_read_b128 v[96:99], v16 offset:{HL}\nds_read_b128 v[100:103], v16 offset:{HL+128}\ns_waitcnt lgkmcnt(0)")
    for bp in range(2):
        for kq in range(4):
            for r in range(4): A(f"v_and_b32 v{32+16*bp+4*kq+r}, v{96+4*bp+kq}, v{5+r}")
    A("v_sub_f32 v20, 1.0, v22\nv_sub_f32 v21, 1.0, v23\nv_cvt_pk_bf16_f32 v20, 0, v20\nv_cvt_pk_bf16_f32 v21, 0, v21\ns_waitcnt vmcnt(1)")
    for kq in range(4):
        for bp in range(2):
            c = "0" if kq == 0 else f"v[{24+4*bp}:{27+4*bp}]"
            A(f"v_mfma_f32_16x16x32_bf16 v[{24+4*bp}:{27+4*bp}], v[{32+16*bp+4*kq}:{35+16*bp+4*kq}], v[{80+4*kq}:{83+4*kq}], {c}")
    A("s_nop 7")
    for i in range(8): A(f"v_mul_f32 v{24+i}, v{24+i}, v{20+i//4}")
    A("L_noffn:")
    A("s_and_b32 s60, s33, 0xff\ns_bfe_u32 s61, s33, 0x80008\ns_bfe_u32 s64, s33, 0x80010\ns_lshr_b32 s65, s33, 24\nv_mov_b32 v9, 0xff")
    A("s_cmp_eq_u32 s36, 3\ns_cselect_b32 s66, 0x00ff00ff, -1\ns_waitcnt vmcnt(0)")
    A("L_bar2:")
    A("s_waitcnt lgkmcnt(0)\ns_barrier")
    stamp(9)
    A("s_cmp_lt_u32 s3, 12\ns_cbranch_scc1 L_hop2")
    A(f"ds_read_b128 v[96:99], v16 offset:{OL}\nds_read_b128 v[100:103], v16 offset:{OL+128}")
    for bp in range(2):
        A(f"s_waitcnt lgkmcnt({1-bp})")
        for kq in range(4):
            for r in range(4): A(f"v_and_b32 v{32+16*bp+4*kq+r}, v{96+4*bp+kq}, v{5+r}")
        if bp == 0: A("s_nop 0")
        for kq in range(4):
            c = "0" if kq == 0 else f"v[{104+4*bp}:{107+4*bp}]"
            A(f"v_mfma_f32_16x16x32_bf16 v[{104+4*bp}:{107+4*bp}], v[{32+16*bp+4*kq}:{35+16*bp+4*kq}], v[{64+4*kq}:{67+4*kq}], {c}")
    for i in range(4): A(f"v_fmac_f32 v{24+i}, v{104+i}, v22")
    for i, sr in enumerate(("s60", "s61", "s64", "s65")): A(f"v_bfi_b32 v{24+i}, v9, {sr}, v{24+i}")
    for i in range(4): A(f"v_fmac_f32 v{28+i}, v{108+i}, v23")
    for i, sr in enumerate(("s60", "s61", "s64", "s65")): A(f"v_bfi_b32 v{28+i}, v9, {sr}, v{28+i}")
    A("s_mov_b32 exec_lo, s66\ns_mov_b32 exec_hi, s66\nbuffer_store_dwordx4 v[24:27], v17, s[48:51], 0 offen sc0 sc1\nbuffer_store_dwordx4 v[28:31], v17, s[48:51], 0 offen offset:3584 sc0 sc1\ns_mov_b64 exec, -1")
    stamp(10)

    A("L_hop2:")
    A("s_cmp_ge_u32 s2, 112\ns_cbranch_scc1 L_fin")
    A(f"s_lshl_b32 s36, s3, 4\nv_lshrrev_b32 v13, 2, v2\nv_add_u32 v13, s36, v13\nv_mul_u32_u24 v13, {P2S}, v13\nv_and_b32 v14, 3, v2\nv_lshl_add_u32 v13, v14, 4, v13")
    A(f"s_lshl_b32 s36, s2, 6\ns_add_u32 s36, s36, {P2}\nv_add_u32 v13, s36, v13")
    A(f"v_lshl_add_u32 v15, v14, 2, v19\nv_lshlrev_b32 v15, 6, v15\ns_lshl_b32 s36, s3, 2\nv_add_u32 v15, s36, v15\ns_mov_b32 s61, 0")
    A("L_p2:")
    A("buffer_load_dwordx4 v[32:35], v13, s[48:51], 0 offen sc0 sc1\ns_add_u32 s61, s61, 1\ns_waitcnt vmcnt(0)")
    tagchk(32, "v44", "v45", True)
    A(f"s_cmp_gt_u32 s61, {SPIN_MAX}\ns_cbranch_scc1 L_p2got\ns_cmp_lg_u64 s[62:63], 0\ns_cbranch_scc1 L_p2")
    A("L_p2got:")
    stamp(11)
    A("v_permlane32_swap_b32 v32, v33\nv_permlane32_swap_b32 v34, v35\nv_add_f32 v32, v32, v33\nv_add_f32 v34, v34, v35\ns_nop 1\nv_permlane16_swap_b32 v32, v34\nv_add_f32 v32, v32, v34\ns_nop 1")
    A("v_add_f32_dpp v32, v32, v32 row_ror:4 row_mask:0xf bank_mask:0xf\ns_nop 1\nv_add_f32_dpp v32, v32, v32 row_ror:8 row_mask:0xf bank_mask:0xf")
    A(f"s_mov_b32 exec_lo, 0x000f000f\ns_mov_b32 exec_hi, 0x000f000f\nds_write_b32 v15, v32 offset:{RD}\ns_mov_b64 exec, -1")
    A("s_waitcnt lgkmcnt(0)\ns_barrier\ns_cmp_lg_u32 s3, 0\ns_cbranch_scc1 L_fin")
    A(f"v_lshlrev_b32 v13, 6, v12\nv_lshl_add_u32 v13, v11, 4, v13\nds_read_b128 v[32:35], v13 offset:{RD}")
    srd(52, 22, 23, None, 3584)
    A("s_lshl_b32 s36, s2, 5\nv_lshlrev_b32 v14, 1, v12\nv_add_u32 v14, s36, v14\ns_waitcnt lgkmcnt(0)")
    A("v_add_f32 v32, v32, v33\nv_add_f32 v34, v34, v35\nv_add_f32 v32, v32, v34\nv_mov_b32 v33, v32\ns_nop 1\nv_permlane32_swap_b32 v32, v33\nv_add_f32 v32, v32, v33\nv_mov_b32 v33, v32\ns_nop 1\nv_permlane16_swap_b32 v32, v33\nv_add_f32 v32, v32, v33\nv_cvt_pk_bf16_f32 v32, v32, v32")
    A("s_mov_b64 exec, 0xffff\nbuffer_store_short v32, v14, s[52:55], 0 offen\ns_mov_b64 exec, -1")
    A("s_cmp_lg_u32 s2, 0\ns_cbranch_scc1 L_fin")
    A("v_mov_b32 v13, 0\nv_mov_b32 v14, s33\ns_mov_b64 exec, 1\nbuffer_store_dword v14, v13, s[48:51], 0 offen\ns_mov_b64 exec, -1")
    A("L_fin:")
    if stamps:
        stamp(12)
        A("L_dly:\ns_sleep 8\ns_memrealtime s[36:37]\ns_waitcnt lgkmcnt(0)\ns_sub_u32 s36, s36, s70\ns_cmp_lt_u32 s36, 3500\ns_cbranch_scc1 L_dly")
        if dbg == "1":
            A("v_mov_b32 v1, 0\ns_mov_b64 exec, 1\ns_not_b32 s70, s70")
            for i in range(13):
                A(f"v_mov_b32 v2, s{70+2*i}\nglobal_atomic_umax v1, v2, s[24:25] offset:{4*i}\ns_nop 0")
            A("s_endpgm")
        A("s_lshl_b32 s36, s2, 4\ns_add_u32 s36, s36, s3\ns_lshl_b32 s36, s36, 7\ns_add_u32 s36, s36, 0x10000000\ns_add_u32 s26, s26, s36\ns_addc_u32 s27, s27, 0\nv_mov_b32 v1, 0\ns_mov_b64 exec, 1")
        for i in range(13):
            A(f"v_mov_b32 v2, s{70+2*i}\nv_mov_b32 v3, s{71+2*i}\nglobal_store_dwordx2 v1, v[2:3], s[26:27] offset:{8*i}\ns_nop 0")
    A("L_end:\ns_endpgm")
    L.append(f'.section .rodata,"a"\n.p2align 6\n.amdhsa_kernel {KN}\n  .amdhsa_next_free_vgpr 128\n  .amdhsa_next_free_sgpr 102\n  .amdhsa_accum_offset 128\n  .amdhsa_group_segment_fixed_size 0\n  .amdhsa_kernarg_size 96\n  .amdhsa_user_sgpr_count 2\n  .amdhsa_user_sgpr_kernarg_segment_ptr 1\n  .amdhsa_system_sgpr_workgroup_id_x 1\n.end_amdhsa_kernel')
    return "\n".join(L) + "\n"

if __name__ == "__main__":
    ref = open("gated_mix__sliding_block_cached__dense_activation_relu__decode.s.ref").read()
    header = "".join(l + "\n" for l in ref.split("\n") if l.startswith(";") and "@launch" not in l)
    out = sys.argv[1]
    kw = dict(a.split("=", 1) for a in sys.argv[2:])
    kw["stamps"] = kw.get("stamps", "0") == "1"
    open(out, "w").write(gen(header=header, **kw))
```
